```python
import torch

def _softmax(x, axis=-1):
    return torch.softmax(x, dim=axis)
def _gelu(x):
    return torch.nn.functional.gelu(x, approximate="tanh")
def _silu(x):
    return torch.nn.functional.silu(x)
def _sigmoid(x):
    return torch.sigmoid(x)
def _layernorm(x, axis=-1, eps=1e-5):
    m = x.mean(dim=axis, keepdim=True)
    v = x.var(dim=axis, keepdim=True, unbiased=False)
    return (x - m) / torch.sqrt(v + eps)
def _scatter_add(tgt, idx, src, axis=0):
    return tgt.clone().index_add_(axis, idx, src)
def _segment_sum(src, seg, n):
    out = torch.zeros((n,) + src.shape[1:], dtype=src.dtype)
    return out.index_add_(0, seg, src)
def _pad(x, pw):
    flat = tuple(v for pair in reversed(pw) for v in pair)
    return torch.nn.functional.pad(x, flat)

kernel_name = 'concat_heads__gqa_block_cached__mha_block_cached__near_ridge'

def setup_inputs():

    _w = (lambda a: (lambda t: t.to(torch.bfloat16) if t.is_floating_point() else t)(torch.as_tensor(a)))
    def _A_setup():
        B, Sq, D = 8, 32, 512
        Hq, Hkv, Sk, Dh = 32, 8, 2048, 128
        assert Hq % Hkv == 0, (Hq, Hkv)
        return {
            "x": _w((lambda *s: torch.randn(*s, dtype=torch.bfloat16) * 0.8)(B, Sq, D)),
            "k_cache": _w((lambda *s: torch.randn(*s, dtype=torch.bfloat16) * 0.8)(B, Hkv, Sk, Dh)),
            "v_cache": _w((lambda *s: torch.randn(*s, dtype=torch.bfloat16) * 0.05)(B, Hkv, Sk, Dh)),
            "wq": _w((lambda *s: torch.randn(*s, dtype=torch.bfloat16) * 0.8)(D, Hq * Dh) * (D ** -0.5)),
            "wo": _w((lambda *s: torch.randn(*s, dtype=torch.bfloat16) * 0.05)(Hq * Dh, D) * ((Hq * Dh) ** -0.5)),
        }
    _A_in = _A_setup()

    def _B_setup():
        B, Sq, D = 8, 32, 512
        H, Sk, Dh = 32, 2048, 128
        return {
            "x": _w((lambda *s: torch.randn(*s, dtype=torch.bfloat16) * 0.8)(B, Sq, D)),
            "k_cache": _w((lambda *s: torch.randn(*s, dtype=torch.bfloat16) * 0.8)(B, H, Sk, Dh)),
            "v_cache": _w((lambda *s: torch.randn(*s, dtype=torch.bfloat16) * 0.05)(B, H, Sk, Dh)),
            "wq": _w((lambda *s: torch.randn(*s, dtype=torch.bfloat16) * 0.8)(D, H * Dh) * (D ** -0.5)),
            "wo": _w((lambda *s: torch.randn(*s, dtype=torch.bfloat16) * 0.05)(H * Dh, D) * ((H * Dh) ** -0.5)),
        }
    _B_in = _B_setup()

    return {
        "A_x": _A_in["x"],
        "A_k_cache": _A_in["k_cache"],
        "A_v_cache": _A_in["v_cache"],
        "A_wq": _A_in["wq"],
        "A_wo": _A_in["wo"],
        "B_x": _B_in["x"],
        "B_k_cache": _B_in["k_cache"],
        "B_v_cache": _B_in["v_cache"],
        "B_wq": _B_in["wq"],
        "B_wo": _B_in["wo"],
    }

def reference(A_x, A_k_cache, A_v_cache, A_wq, A_wo, B_x, B_k_cache, B_v_cache, B_wq, B_wo):
    def _A_ref(x, k_cache, v_cache, wq, wo):
        B, Sq, D = x.shape
        Hq, Dh = 32, 128
        Hkv = k_cache.shape[1]
        rep = Hq // Hkv
        q = (lambda x, *d: x.permute(*d))((x @ wq).reshape(B, Sq, Hq, Dh), 0, 2, 1, 3)
        k = (lambda x, n, axis: torch.repeat_interleave(x, n, dim=axis))(k_cache, rep, axis=1)
        v = (lambda x, n, axis: torch.repeat_interleave(x, n, dim=axis))(v_cache, rep, axis=1)
        scores = torch.einsum("bhqd,bhkd->bhqk", q, k) * (Dh ** -0.5)
        p = _softmax(scores, axis=-1)
        o = torch.einsum("bhqk,bhkd->bhqd", p, v)
        return (lambda x, *d: x.permute(*d))(o, 0, 2, 1, 3).reshape(B, Sq, Hq * Dh) @ wo

    def _B_ref(x, k_cache, v_cache, wq, wo):
        B, Sq, D = x.shape
        H, Dh = 32, 128
        q = (lambda x, *d: x.permute(*d))((x @ wq).reshape(B, Sq, H, Dh), 0, 2, 1, 3)
        scores = torch.einsum("bhqd,bhkd->bhqk", q, k_cache) * (Dh ** -0.5)
        p = _softmax(scores, axis=-1)
        o = torch.einsum("bhqk,bhkd->bhqd", p, v_cache)
        return (lambda x, *d: x.permute(*d))(o, 0, 2, 1, 3).reshape(B, Sq, H * Dh) @ wo

    a = _A_ref(A_x, A_k_cache, A_v_cache, A_wq, A_wo)
    b = _B_ref(B_x, B_k_cache, B_v_cache, B_wq, B_wo)
    return torch.concatenate([a, b], axis=-1)
```

```python
import sys, math
NAME = "concat_heads__gqa_block_cached__mha_block_cached__near_ridge"

class A:
    def __init__(self): self.L = []
    def __call__(self, s): self.L.append("  " + s)
    def lab(self, s): self.L.append(s + ":")
    def raw(self, s): self.L.append(s)
    def c(self, s): self.L.append("  ; " + s)
    def text(self): return "\n".join(self.L) + "\n"

def vr(b, n=1): return f"v{b}" if n == 1 else f"v[{b}:{b+n-1}]"
def sr(b, n=1): return f"s{b}" if n == 1 else f"s[{b}:{b+n-1}]"

SCALE_C = 128 ** -0.5 * math.log2(math.e)
import struct
def f32bits(x): return struct.unpack("<I", struct.pack("<f", x))[0]

def gen_k1(a, kname, opt):
    NT = "nt" if opt.get("nt", True) else ""
    WNT = "nt" if opt.get("wnt", False) else ""
    LOCKSTEP = opt.get("lockstep", True)
    S_W, S_ROLE, S_WW, S_B, S_H = 3, 4, 5, 6, 7
    SRD_K, SRD_V, SRD_X, SRD_W, SRD_O = 28, 32, 36, 40, 44
    S_KBUF, S_VBUF, S_KOFF, S_VOFF, S_T0, S_CNT, S_C, S_SELLO, S_SELHI = 48, 49, 50, 51, 52, 53, 54, 55, 56
    S_X, S_J, S_T1, S_T2, S_QS = 57, 58, 59, 68, 69
    V_KDMA, V_VDMA, V_KRD, V_VRD = 2, 6, 7, 8
    V_T0, V_T1, V_T2, V_T3 = 12, 13, 14, 15
    V_O, V_Q, V_KF, V_VF, V_S, V_P = 64, 128, 160, 192, 224, 240
    V_M, V_L, V_AL, V_MC, V_TM, V_TM2, V_MN = 248, 249, 250, 251, 252, 253, 254
    QS_BASE = 131072

    a.raw(f".globl {kname}"); a.raw(".p2align 8"); a.raw(f".type {kname},@function"); a.lab(kname)
    a("s_cmp_ge_u32 s2, 256"); a("s_cbranch_scc1 K1_END")
    a("s_load_dwordx8 s[8:15], s[0:1], 0")
    a("s_load_dwordx8 s[16:23], s[0:1], 40")
    a("s_load_dwordx2 s[24:25], s[0:1], 96")
    a("v_lshrrev_b32 v1, 6, v0")
    a("v_and_b32 v0, 63, v0")
    a(f"v_readfirstlane_b32 s{S_W}, v1")
    a(f"s_and_b32 s{S_X}, s2, 7")
    a(f"s_lshr_b32 s{S_J}, s2, 3"); a(f"s_and_b32 s{S_J}, s{S_J}, 3")
    a(f"s_lshr_b32 s{S_B}, s2, 5")
    a(f"s_lshl_b32 s{S_H}, s{S_X}, 2"); a(f"s_add_u32 s{S_H}, s{S_H}, s{S_J}")
    a("s_nop 3")
    a(f"s_lshr_b32 s{S_ROLE}, s{S_W}, 2"); a(f"s_and_b32 s{S_WW}, s{S_W}, 3")
    a(f"s_lshl_b32 s{S_KBUF}, s{S_W}, 14"); a(f"s_add_u32 s{S_VBUF}, s{S_KBUF}, 8192")
    a(f"s_lshl_b32 s{S_QS}, s{S_ROLE}, 14"); a(f"s_add_u32 s{S_QS}, s{S_QS}, {QS_BASE}")
    a(f"s_mov_b32 s{S_C}, {hex(f32bits(SCALE_C))}")
    a(f"s_mov_b32 s{S_SELLO}, 0x05040100"); a(f"s_mov_b32 s{S_SELHI}, 0x07060302")
    a.c("lane address precompute")
    a(f"v_lshrrev_b32 v{V_T0}, 4, v0")
    a(f"v_and_b32 v{V_T1}, 15, v0")
    a(f"v_xor_b32 v{V_T2}, v{V_T1}, v{V_T0}")
    for m in range(4):
        a(f"v_xor_b32 v{V_T3}, {4*m}, v{V_T2}")
        a(f"v_lshlrev_b32 v{V_T3}, 4, v{V_T3}")
        a(f"v_lshl_add_u32 v{V_KDMA+m}, v{V_T0}, 8, v{V_T3}")
        a(f"v_lshl_add_u32 v{16+m}, v{V_T0}, 10, v{V_T3}")
    a(f"v_lshlrev_b32 v{V_T3}, 2, v{V_T0}")
    a(f"v_xor_b32 v{V_T3}, v{V_T1}, v{V_T3}")
    a(f"v_lshlrev_b32 v{V_T3}, 4, v{V_T3}")
    a(f"v_lshl_add_u32 v{V_VDMA}, v{V_T0}, 8, v{V_T3}")
    a(f"v_lshlrev_b32 v20, 4, v{V_T1}")
    a(f"v_lshl_add_u32 v20, v{V_T0}, 16, v20")
    a(f"v_lshlrev_b32 v21, 4, v{V_T2}")
    a(f"v_lshl_add_u32 v21, v{V_T1}, 8, v21")
    a(f"v_add_u32 v21, s{S_VBUF}, v21")
    a("v_and_b32 v22, 31, v0")
    a("v_and_b32 v23, 0x13, v22")
    a("v_and_b32 v24, 4, v22"); a("v_lshlrev_b32 v24, 1, v24"); a("v_or_b32 v23, v23, v24")
    a("v_and_b32 v24, 8, v22"); a("v_lshrrev_b32 v24, 1, v24"); a("v_or_b32 v23, v23, v24")
    a("v_lshrrev_b32 v24, 5, v0")
    a("v_and_b32 v25, 15, v23"); a("v_xor_b32 v25, v25, v24"); a("v_lshlrev_b32 v25, 4, v25")
    a("v_lshl_add_u32 v25, v23, 8, v25")
    a(f"v_add_u32 v{V_KRD}, s{S_KBUF}, v25")
    a(f"v_lshrrev_b32 v22, 1, v{V_T0}")
    a("v_lshlrev_b32 v22, 3, v22")
    a(f"v_lshrrev_b32 v23, 2, v{V_T1}")
    a("v_add_u32 v22, v22, v23")
    a("v_lshlrev_b32 v22, 8, v22")
    a(f"v_and_b32 v24, 1, v{V_T0}"); a("v_lshlrev_b32 v24, 5, v24"); a("v_add_u32 v22, v22, v24")
    a(f"v_and_b32 v24, 2, v{V_T1}"); a("v_lshlrev_b32 v24, 3, v24"); a("v_add_u32 v22, v22, v24")
    a(f"v_and_b32 v24, 1, v{V_T1}"); a("v_lshlrev_b32 v24, 3, v24"); a("v_add_u32 v22, v22, v24")
    a(f"v_add_u32 v22, s{S_VBUF}, v22")
    for db in range(4):
        a(f"v_xor_b32 v24, {db}, v23"); a(f"v_lshl_add_u32 v{V_VRD+db}, v24, 6, v22")
    a.c("zero q scratch")
    a(f"s_lshl_b32 s{S_T0}, s{S_W}, 12"); a(f"s_add_u32 s{S_T0}, s{S_T0}, {QS_BASE}")
    a("v_lshlrev_b32 v26, 4, v0"); a(f"v_add_u32 v26, s{S_T0}, v26")
    for i in range(4): a(f"v_mov_b32 v{28+i}, 0")
    for i in range(4): a(f"ds_write_b128 v26, v[28:31] offset:{i*1024}")
    a("s_waitcnt lgkmcnt(0)")
    a(f"s_cmp_eq_u32 s{S_ROLE}, 0")
    for i in range(8): a(f"s_cselect_b32 s{60+i}, s{16+i}, s{8+i}")
    a(f"s_lshl_b32 s{S_T0}, s{S_B}, 5"); a(f"s_add_u32 s{S_T0}, s{S_T0}, s{S_H}")
    a(f"s_lshl_b32 s{S_T1}, s{S_B}, 3"); a(f"s_add_u32 s{S_T1}, s{S_T1}, s{S_X}")
    a(f"s_cmp_eq_u32 s{S_ROLE}, 0")
    a(f"s_cselect_b32 s{S_T0}, s{S_T0}, s{S_T1}")
    a(f"s_lshl_b32 s{S_T0}, s{S_T0}, 19")
    def srd(d, p, off, n):
        if off is None:
            a(f"s_mov_b32 s{d}, s{p}"); a(f"s_and_b32 s{d+1}, s{p+1}, 0xffff")
        else:
            a(f"s_add_u32 s{d}, s{p}, s{off}"); a(f"s_addc_u32 s{d+1}, s{p+1}, 0"); a(f"s_and_b32 s{d+1}, s{d+1}, 0xffff")
        a(f"s_mov_b32 s{d+2}, {n}"); a(f"s_mov_b32 s{d+3}, 0x20000")
    srd(SRD_X, 60, None, 262144)
    srd(SRD_W, 66, None, 4194304)
    srd(SRD_K, 62, S_T0, 524288)
    srd(SRD_V, 64, S_T0, 524288)
    srd(SRD_O, 24, None, 4194304)
    a.c("x DMA")
    a(f"s_lshl_b32 s{S_T0}, s{S_B}, 15"); a(f"s_lshl_b32 s{S_T1}, s{S_WW}, 8"); a(f"s_add_u32 s{S_T0}, s{S_T0}, s{S_T1}")
    for i in range(8):
        a(f"s_add_u32 m0, s{S_VBUF}, {i*1024}")
        a(f"s_add_u32 s{S_T1}, s{S_T0}, {i*4096}")
        a(f"buffer_load_dwordx4 v{16+(i&3)}, s[{SRD_X}:{SRD_X+3}], s{S_T1} offen {WNT} lds")
    a.c("wq loads")
    a(f"s_lshl_b32 s{S_T0}, s{S_WW}, 20"); a(f"s_lshl_b32 s{S_T1}, s{S_H}, 8"); a(f"s_add_u32 s{S_T0}, s{S_T0}, s{S_T1}")
    for t in range(4):
        for r in range(8):
            a(f"s_add_u32 s{S_T1}, s{S_T0}, {t*262144 + r*8192}")
            b = 128 + 32*t + 4*r
            a(f"buffer_load_dwordx4 v[{b}:{b+3}], v20, s[{SRD_W}:{SRD_W+3}], s{S_T1} offen {WNT}")
    def dma_tile(srdb, soff, lbuf, voffs):
        a(f"s_mov_b32 m0, s{lbuf}")
        a(f"s_add_u32 s{S_T0}, s{soff}, 4096")
        for i in range(4):
            a(f"buffer_load_dwordx4 v{voffs[i]}, s[{srdb}:{srdb+3}], s{soff} offen offset:{i*1024} {NT} lds")
        a(f"s_add_u32 m0, s{lbuf}, 4096")
        a(f"s_add_u32 s{soff}, s{soff}, 32768")
        for i in range(4):
            a(f"buffer_load_dwordx4 v{voffs[i]}, s[{srdb}:{srdb+3}], s{S_T0} offen offset:{i*1024} {NT} lds")
    def dma_k(): dma_tile(SRD_K, S_KOFF, S_KBUF, [V_KDMA+i for i in range(4)])
    def dma_v(): dma_tile(SRD_V, S_VOFF, S_VBUF, [V_VDMA]*4)
    a(f"s_lshl_b32 s{S_KOFF}, s{S_WW}, 13"); a(f"s_mov_b32 s{S_VOFF}, s{S_KOFF}")
    a.c("K0 DMA")
    dma_k()
    a.c("x frags: v[32:63] = X[t][qb]")
    a("s_waitcnt vmcnt(40)")
    for t in range(4):
        a(f"v_xor_b32 v22, {64*t}, v21")
        for qb in range(2):
            b = 32 + (t*2+qb)*4
            a(f"ds_read_b128 v[{b}:{b+3}], v22 offset:{qb*4096}")
    a("s_waitcnt lgkmcnt(0)")
    a.c("V0 DMA")
    dma_v()
    for t in range(4):
        a(f"s_waitcnt vmcnt({40 - 8*t})")
        for c in range(4):
            T = 16 + (c & 1)*8
            for i in range(4):
                w0 = 128 + 32*t + 4*(2*i) + c; w1 = 128 + 32*t + 4*(2*i+1) + c
                a(f"v_perm_b32 v{T+i}, v{w1}, v{w0}, s{S_SELLO}")
                a(f"v_perm_b32 v{T+4+i}, v{w1}, v{w0}, s{S_SELHI}")
            a("s_nop 1")
            for lohi in range(2):
                j = 2*c + lohi
                for qb in range(2):
                    acc = V_O + (j*2+qb)*4
                    xb = 32 + (t*2+qb)*4
                    cin = "0" if t == 0 else f"v[{acc}:{acc+3}]"
                    a(f"v_mfma_f32_16x16x32_bf16 v[{acc}:{acc+3}], v[{T+4*lohi}:{T+4*lohi+3}], v[{xb}:{xb+3}], {cin}")
    a.c("q reduce")
    a(f"v_lshrrev_b32 v22, 4, v0"); a("v_and_b32 v23, 15, v0")
    a("v_lshlrev_b32 v24, 12, v22"); a("v_lshl_add_u32 v24, v23, 2, v24"); a(f"v_add_u32 v24, s{S_QS}, v24")
    a("v_and_b32 v25, 1, v22"); a("v_lshlrev_b32 v25, 6, v25")
    a("v_add_u32 v26, v24, v25")
    a("v_xor_b32 v25, 64, v25"); a("v_add_u32 v27, v24, v25")
    a("s_barrier")
    a("s_nop 7")
    for j in range(8):
        for qb in range(2):
            for r in range(4):
                acc = V_O + (j*2+qb)*4 + r
                a(f"ds_add_f32 v{26+qb}, v{acc} offset:{(8*r+j)*128}")
    a("s_waitcnt lgkmcnt(0)")
    a("s_barrier")
    a("v_and_b32 v22, 31, v0"); a("v_lshrrev_b32 v23, 5, v0")
    a("v_lshlrev_b32 v24, 10, v23"); a(f"v_add_u32 v24, s{S_QS}, v24")
    a("v_lshl_add_u32 v26, v22, 2, v24")
    a("v_xor_b32 v22, 16, v22"); a("v_lshl_add_u32 v27, v22, 2, v24")
    for t in range(8):
        for e in range(8):
            a(f"ds_read_b32 v{160 + t*8 + e}, v{26 + ((t>>1)&1)} offset:{(16*t+e)*128}")
        if t % 2 == 1 or True:
            pass
    a("s_waitcnt lgkmcnt(0)")
    for t in range(8):
        for e2 in range(4):
            a(f"v_cvt_pk_bf16_f32 v{V_Q + t*4 + e2}, v{160 + t*8 + 2*e2}, v{160 + t*8 + 2*e2 + 1}")
    for i in range(64): a(f"v_mov_b32 v{V_O+i}, 0")
    a(f"v_mov_b32 v{V_M}, 0xf149f2ca")
    a(f"v_mov_b32 v{V_L}, 0")
    a(f"s_mov_b32 s{S_CNT}, 0")
    def body(last):
        a("s_waitcnt vmcnt(8)")
        for t in range(8):
            if t == 0:
                a(f"ds_read_b128 v[{V_KF}:{V_KF+3}], v{V_KRD}")
            else:
                a(f"v_xor_b32 v{V_T0 + (t&1)}, {32*t}, v{V_KRD}")
                a(f"ds_read_b128 v[{V_KF+4*t}:{V_KF+4*t+3}], v{V_T0 + (t&1)}")
        a("s_waitcnt lgkmcnt(0)")
        if not last: dma_k()
        for t in range(8):
            cin = "0" if t == 0 else f"v[{V_S}:{V_S+15}]"
            a(f"v_mfma_f32_32x32x16_bf16 v[{V_S}:{V_S+15}], v[{V_KF+4*t}:{V_KF+4*t+3}], v[{V_Q+4*t}:{V_Q+4*t+3}], {cin}")
        a(f"s_waitcnt vmcnt({0 if last else 8})")
        for db in range(4):
            for s in range(2):
                b = V_VF + (db*2+s)*4
                for u in range(2):
                    a(f"ds_read_b64_tr_b16 v[{b+2*u}:{b+2*u+1}], v{V_VRD+db} offset:{s*4096+u*1024}")
        a("s_nop 7")
        S = V_S
        a(f"v_max3_f32 v{V_TM}, v{S}, v{S+1}, v{S+2}")
        for i in range(3, 15, 2): a(f"v_max3_f32 v{V_TM}, v{V_TM}, v{S+i}, v{S+i+1}")
        a(f"v_max_f32 v{V_TM}, v{V_TM}, v{S+15}")
        a(f"v_mov_b32 v{V_TM2}, v{V_TM}")
        a("s_nop 1")
        a(f"v_permlane32_swap_b32 v{V_TM2}, v{V_TM}")
        a(f"v_max_f32 v{V_TM}, v{V_TM}, v{V_TM2}")
        a(f"v_max_f32 v{V_MN}, v{V_M}, v{V_TM}")
        a(f"v_sub_f32 v{V_AL}, v{V_M}, v{V_MN}")
        a(f"v_mul_f32 v{V_AL}, s{S_C}, v{V_AL}")
        a(f"v_exp_f32 v{V_AL}, v{V_AL}")
        a(f"v_mul_f32 v{V_MC}, s{S_C}, v{V_MN}")
        a(f"v_mov_b32 v{V_M}, v{V_MN}")
        for i in range(16): a(f"v_fma_f32 v{S+i}, v{S+i}, s{S_C}, -v{V_MC}")
        for i in range(16): a(f"v_exp_f32 v{S+i}, v{S+i}")
        a(f"v_mul_f32 v{V_L}, v{V_L}, v{V_AL}")
        for i in range(64): a(f"v_mul_f32 v{V_O+i}, v{V_O+i}, v{V_AL}")
        for i in range(16): a(f"v_add_f32 v{V_L}, v{V_L}, v{S+i}")
        for i in range(8): a(f"v_cvt_pk_bf16_f32 v{V_P+i}, v{S+2*i}, v{S+2*i+1}")
        a("s_waitcnt lgkmcnt(0)")
        if not last: dma_v()
        else: a("s_nop 1")
        for s in range(2):
            for db in range(4):
                b = V_VF + (db*2+s)*4
                o = V_O + db*16
                a(f"v_mfma_f32_32x32x16_bf16 v[{o}:{o+15}], v[{b}:{b+3}], v[{V_P+4*s}:{V_P+4*s+3}], v[{o}:{o+15}]")
        if LOCKSTEP and not last: a("s_barrier")
    a.lab("K1_LOOP")
    body(False)
    a(f"s_add_u32 s{S_CNT}, s{S_CNT}, 1")
    a(f"s_cmp_lt_u32 s{S_CNT}, 15")
    a("s_cbranch_scc1 K1_LOOP")
    body(True)
    a.c("combine")
    a(f"v_mov_b32 v{V_TM2}, v{V_L}")
    a("s_nop 1")
    a(f"v_permlane32_swap_b32 v{V_TM2}, v{V_L}")
    a(f"v_add_f32 v{V_L}, v{V_L}, v{V_TM2}")
    a("v_and_b32 v22, 31, v0")
    a(f"s_lshl_b32 s{S_T0}, s{S_W}, 8"); a(f"s_add_u32 s{S_T0}, s{S_T0}, {QS_BASE}")
    a("v_lshlrev_b32 v23, 3, v22"); a(f"v_add_u32 v24, s{S_T0}, v23")
    a(f"v_mov_b32 v26, v{V_M}"); a(f"v_mov_b32 v27, v{V_L}")
    a("ds_write_b64 v24, v[26:27]")
    a("s_waitcnt lgkmcnt(0)")
    a("s_barrier")
    a(f"s_lshl_b32 s{S_T0}, s{S_ROLE}, 10"); a(f"s_add_u32 s{S_T0}, s{S_T0}, {QS_BASE}")
    a(f"v_add_u32 v24, s{S_T0}, v23")
    for i in range(4): a(f"ds_read_b64 v[{32+2*i}:{33+2*i}], v24 offset:{i*256}")
    a("s_waitcnt lgkmcnt(0)")
    a("v_max3_f32 v25, v32, v34, v36"); a("v_max_f32 v25, v25, v38")
    for i in range(4):
        a(f"v_sub_f32 v{40+i}, v{32+2*i}, v25"); a(f"v_mul_f32 v{40+i}, s{S_C}, v{40+i}")
    a(f"v_sub_f32 v44, v{V_M}, v25"); a(f"v_mul_f32 v44, s{S_C}, v44")
    for i in range(5): a(f"v_exp_f32 v{40+i}, v{40+i}")
    a("s_nop 0")
    a("v_mul_f32 v45, v40, v33")
    for i in range(1, 4): a(f"v_fma_f32 v45, v{40+i}, v{33+2*i}, v45")
    a("v_rcp_f32 v45, v45")
    a("s_nop 0")
    a("v_mul_f32 v44, v44, v45")
    a("s_nop 7")
    for i in range(64): a(f"v_mul_f32 v{V_O+i}, v{V_O+i}, v44")
    a("v_lshrrev_b32 v23, 5, v0")
    a("v_and_b32 v24, 15, v22")
    a("v_xor_b32 v24, v24, v23")
    a("v_lshlrev_b32 v24, 4, v24")
    a("v_lshl_add_u32 v24, v22, 9, v24")
    a(f"v_add_u32 v24, s{S_KBUF}, v24")
    for db in range(4):
        for u in range(4):
            ch = 8*db + 2*u
            a(f"v_xor_b32 v25, {(ch & 15)*16}, v24")
            b = V_O + db*16 + u*4
            a(f"ds_write_b128 v25, v[{b}:{b+3}] offset:{(ch & 16)*16}")
    a("s_waitcnt lgkmcnt(0)")
    a("s_barrier")
    a("v_lshlrev_b32 v25, 1, v23")
    a(f"s_lshl_b32 s{S_T0}, s{S_WW}, 3")
    a(f"v_add_u32 v25, s{S_T0}, v25")
    a("v_and_b32 v26, 15, v22")
    a(f"s_lshl_b32 s{S_T1}, s{S_ROLE}, 16")
    for u in range(2):
        for k in range(2):
            a(f"v_add_u32 v27, {4*u+k}, v25")
            a("v_xor_b32 v27, v27, v26")
            a("v_lshlrev_b32 v27, 4, v27")
            a("v_lshl_add_u32 v27, v22, 9, v27")
            a(f"v_add_u32 v27, s{S_T1}, v27")
            for w in range(4):
                b = 128 + ((u*2+k)*4 + w)*4
                a(f"ds_read_b128 v[{b}:{b+3}], v27 offset:{w*16384}")
    a("s_waitcnt lgkmcnt(0)")
    for u in range(2):
        for k in range(2):
            b = 128 + ((u*2+k)*4)*4
            for e in range(4):
                a(f"v_add_f32 v{b+e}, v{b+e}, v{b+4+e}")
                a(f"v_add_f32 v{b+8+e}, v{b+8+e}, v{b+12+e}")
                a(f"v_add_f32 v{b+e}, v{b+e}, v{b+8+e}")
            a(f"v_cvt_pk_bf16_f32 v{200+u*4+k*2}, v{b}, v{b+1}")
            a(f"v_cvt_pk_bf16_f32 v{200+u*4+k*2+1}, v{b+2}, v{b+3}")
    a(f"s_xor_b32 s{S_T0}, s{S_ROLE}, 1")
    a(f"s_lshl_b32 s{S_T0}, s{S_T0}, 3"); a(f"s_add_u32 s{S_T0}, s{S_T0}, s{S_B}")
    a(f"s_lshl_b32 s{S_T0}, s{S_T0}, 5"); a(f"s_add_u32 s{S_T0}, s{S_T0}, s{S_H}")
    a(f"s_lshl_b32 s{S_T0}, s{S_T0}, 13")
    a(f"s_lshl_b32 s{S_T1}, s{S_WW}, 11"); a(f"s_add_u32 s{S_T0}, s{S_T0}, s{S_T1}")
    a("v_lshlrev_b32 v27, 4, v0")
    a(f"buffer_store_dwordx4 v[200:203], v27, s[{SRD_O}:{SRD_O+3}], s{S_T0} offen")
    a(f"buffer_store_dwordx4 v[204:207], v27, s[{SRD_O}:{SRD_O+3}], s{S_T0} offen offset:1024")
    a.lab("K1_END")
    a("s_endpgm")

def gen_k2(a, kname, opt):
    WNT = "nt" if opt.get("k2nt", False) else ""
    S_W = 3
    SRD_WO, SRD_OI, SRD_OUT = 28, 32, 36
    S_LB, S_T0, S_T1, S_P, S_MB, S_N0, S_WOFF, S_OOFF = 40, 41, 42, 43, 44, 45, 46, 47
    a.raw(f".globl {kname}"); a.raw(".p2align 8"); a.raw(f".type {kname},@function"); a.lab(kname)
    a("s_cmp_ge_u32 s2, 256"); a("s_cbranch_scc1 K2_END")
    a("s_load_dwordx2 s[8:9], s[0:1], 32")
    a("s_load_dwordx2 s[10:11], s[0:1], 72")
    a("s_load_dwordx2 s[12:13], s[0:1], 80")
    a("s_load_dwordx2 s[14:15], s[0:1], 96")
    a("v_lshrrev_b32 v1, 6, v0")
    a("v_and_b32 v0, 63, v0")
    a(f"v_readfirstlane_b32 s{S_W}, v1")
    a(f"s_and_b32 s{S_P}, s2, 1")
    a(f"s_lshr_b32 s{S_T0}, s2, 1"); a(f"s_and_b32 s{S_T0}, s{S_T0}, 3")
    a(f"s_lshr_b32 s{S_T1}, s2, 3"); a(f"s_lshr_b32 s{S_MB}, s{S_T1}, 2"); a(f"s_and_b32 s{S_T1}, s{S_T1}, 3")
    a(f"s_lshl_b32 s{S_T0}, s{S_T0}, 2"); a(f"s_add_u32 s{S_N0}, s{S_T0}, s{S_T1}"); a(f"s_lshl_b32 s{S_N0}, s{S_N0}, 5")
    a(f"s_lshl_b32 s{S_LB}, s{S_W}, 14")
    a("v_lshrrev_b32 v2, 2, v0"); a("v_lshlrev_b32 v2, 10, v2"); a("v_and_b32 v3, 3, v0"); a("v_lshl_add_u32 v2, v3, 4, v2")
    a("v_lshlrev_b32 v3, 4, v0")
    a("v_lshrrev_b32 v4, 4, v0"); a("v_and_b32 v5, 15, v0")
    a("v_lshrrev_b32 v6, 1, v4"); a("v_lshlrev_b32 v6, 3, v6"); a("v_lshrrev_b32 v7, 2, v5"); a("v_add_u32 v6, v6, v7"); a("v_lshlrev_b32 v6, 6, v6")
    a("v_and_b32 v7, 1, v4"); a("v_lshl_add_u32 v6, v7, 5, v6")
    a("v_and_b32 v7, 3, v5"); a("v_lshl_add_u32 v6, v7, 3, v6")
    a(f"v_add_u32 v4, s{S_LB}, v6")
    a("s_waitcnt lgkmcnt(0)")
    a(f"s_cmp_eq_u32 s{S_P}, 0")
    a("s_cselect_b32 s16, s8, s10"); a("s_cselect_b32 s17, s9, s11")
    def srd(d, p, n):
        a(f"s_mov_b32 s{d}, s{p}"); a(f"s_and_b32 s{d+1}, s{p+1}, 0xffff"); a(f"s_mov_b32 s{d+2}, {n}"); a(f"s_mov_b32 s{d+3}, 0x20000")
    srd(SRD_WO, 16, 4194304); srd(SRD_OI, 14, 4194304); srd(SRD_OUT, 12, 524288)
    a(f"s_lshl_b32 s{S_WOFF}, s{S_W}, 19"); a(f"s_lshl_b32 s{S_T0}, s{S_N0}, 1"); a(f"s_add_u32 s{S_WOFF}, s{S_WOFF}, s{S_T0}")
    a(f"s_lshl_b32 s{S_OOFF}, s{S_P}, 3"); a(f"s_add_u32 s{S_OOFF}, s{S_OOFF}, s{S_MB}"); a(f"s_lshl_b32 s{S_OOFF}, s{S_OOFF}, 8")
    a(f"s_lshl_b32 s{S_T0}, s{S_W}, 5"); a(f"s_add_u32 s{S_OOFF}, s{S_OOFF}, s{S_T0}"); a(f"s_lshl_b32 s{S_OOFF}, s{S_OOFF}, 10")
    q = []
    def wo_slot(j):
        for i in range(4):
            a(f"s_add_u32 m0, s{S_LB}, {(j&3)*4096 + i*1024}")
            a(f"s_add_u32 s{S_T0}, s{S_WOFF}, {(j*64 + i*16)*1024}")
            a(f"buffer_load_dwordx4 v2, s[{SRD_WO}:{SRD_WO+3}], s{S_T0} offen {WNT} lds")
            q.append(("w", j))
    def o_ld(ks):
        b = 128 + ks*4
        off = ks*1024
        if off < 4096:
            a(f"buffer_load_dwordx4 v[{b}:{b+3}], v3, s[{SRD_OI}:{SRD_OI+3}], s{S_OOFF} offen offset:{off}")
        else:
            a(f"s_add_u32 s{S_T1}, s{S_OOFF}, {off & ~4095}")
            a(f"buffer_load_dwordx4 v[{b}:{b+3}], v3, s[{SRD_OI}:{SRD_OI+3}], s{S_T1} offen offset:{off & 4095}")
        q.append(("o", ks))
    def wait_for(pred):
        last = max(i for i, t in enumerate(q) if pred(t))
        n = len(q) - 1 - last
        a(f"s_waitcnt vmcnt({n})")
        del q[:last+1]
    for j in range(4):
        wo_slot(j)
        for ks in range(4*j, 4*j+4): o_ld(ks)
    for ks in range(16, 32): o_ld(ks)
    ACC = 64
    for j in range(8):
        if any(t == ("w", j) or (t[0] == "o" and t[1] // 4 == j) for t in q):
            wait_for(lambda t: t == ("w", j) or (t[0] == "o" and t[1] // 4 == j))
        for s in range(4):
            b = 16 + s*4
            for u in range(2):
                a(f"ds_read_b64_tr_b16 v[{b+2*u}:{b+2*u+1}], v4 offset:{(j&3)*4096 + (16*s + 4*u)*64}")
        a("s_waitcnt lgkmcnt(0)")
        if j + 4 < 8: wo_slot(j+4)
        for s in range(4):
            ks = 4*j + s
            cin = "0" if ks == 0 else f"v[{ACC}:{ACC+15}]"
            a(f"v_mfma_f32_32x32x16_bf16 v[{ACC}:{ACC+15}], v[{16+s*4}:{16+s*4+3}], v[{128+ks*4}:{128+ks*4+3}], {cin}")
    a("v_and_b32 v5, 31, v0"); a("v_lshrrev_b32 v6, 5, v0")
    a("v_and_b32 v7, 7, v5"); a("v_xor_b32 v7, v7, v6"); a("v_lshlrev_b32 v7, 4, v7")
    a("v_lshl_add_u32 v7, v5, 7, v7"); a(f"v_add_u32 v7, s{S_LB}, v7")
    a("s_nop 7"); a("s_nop 3")
    for u in range(4):
        a(f"v_xor_b32 v8, {2*u*16}, v7")
        a(f"ds_write_b128 v8, v[{ACC+4*u}:{ACC+4*u+3}]")
    a("s_waitcnt lgkmcnt(0)")
    a("s_barrier")
    a(f"s_lshl_b32 s{S_T0}, s{S_W}, 2")
    a("v_lshrrev_b32 v5, 4, v0"); a(f"v_add_u32 v5, s{S_T0}, v5")
    a("v_and_b32 v6, 15, v0")
    a("v_lshrrev_b32 v7, 1, v6"); a("v_and_b32 v8, 7, v5"); a("v_xor_b32 v7, v7, v8"); a("v_lshlrev_b32 v7, 4, v7")
    a("v_and_b32 v8, 1, v6"); a("v_lshl_add_u32 v7, v8, 3, v7")
    a("v_lshl_add_u32 v7, v5, 7, v7")
    for w in range(8):
        if w == 4: a("v_add_u32 v7, 65536, v7")
        a(f"ds_read_b64 v[{16+2*w}:{17+2*w}], v7 offset:{(w&3)*16384}")
    a("s_waitcnt lgkmcnt(0)")
    for w in (0, 2, 4, 6):
        a(f"v_add_f32 v{16+2*w}, v{16+2*w}, v{18+2*w}"); a(f"v_add_f32 v{17+2*w}, v{17+2*w}, v{19+2*w}")
    for w in (0, 4):
        a(f"v_add_f32 v{16+2*w}, v{16+2*w}, v{20+2*w}"); a(f"v_add_f32 v{17+2*w}, v{17+2*w}, v{21+2*w}")
    a("v_add_f32 v16, v16, v24"); a("v_add_f32 v17, v17, v25")
    a("v_cvt_pk_bf16_f32 v16, v16, v17")
    a(f"s_lshl_b32 s{S_T0}, s{S_MB}, 16"); a(f"s_lshl_b32 s{S_T1}, s{S_P}, 10"); a(f"s_add_u32 s{S_T0}, s{S_T0}, s{S_T1}")
    a(f"s_lshl_b32 s{S_T1}, s{S_N0}, 1"); a(f"s_add_u32 s{S_T0}, s{S_T0}, s{S_T1}")
    a("v_lshlrev_b32 v7, 11, v5"); a("v_lshl_add_u32 v7, v6, 2, v7")
    a(f"buffer_store_dword v16, v7, s[{SRD_OUT}:{SRD_OUT+3}], s{S_T0} offen")
    a.lab("K2_END")
    a("s_endpgm")

def kd(a, kname, nv=256, ns=102):
    a.raw(".p2align 6"); a.raw(f".amdhsa_kernel {kname}")
    a.raw(f"  .amdhsa_next_free_vgpr {nv}"); a.raw(f"  .amdhsa_next_free_sgpr {ns}"); a.raw(f"  .amdhsa_accum_offset {((nv+3)//4)*4}")
    a.raw("  .amdhsa_group_segment_fixed_size 0"); a.raw("  .amdhsa_kernarg_size 104"); a.raw("  .amdhsa_user_sgpr_count 2")
    a.raw("  .amdhsa_user_sgpr_kernarg_segment_ptr 1"); a.raw("  .amdhsa_system_sgpr_workgroup_id_x 1"); a.raw(".end_amdhsa_kernel")

def gen(opt=None):
    opt = opt or {}
    a = A()
    k1 = "attn_kernel"; k2 = "oproj_kernel"
    a.raw(f"; @launch kernel={k1} grid=(256,1,1) block=(512,1,1) lds=163840")
    a.raw(f"; @launch kernel={k2} grid=(256,1,1) block=(512,1,1) lds=131072")
    a.raw('.amdgcn_target "amdgcn-amd-amdhsa--gfx950"')
    a.raw(".text")
    gen_k1(a, k1, opt)
    gen_k2(a, k2, opt)
    a.raw('.section .rodata,"a"')
    kd(a, k1, 256, 80); kd(a, k2, 256, 64)
    return a.text()

if __name__ == "__main__":
    out = sys.argv[1] if len(sys.argv) > 1 else f"cdna_kernels/{NAME}.s"
    open(out, "w").write(gen())
    print("wrote", out)
```
